```python
import torch

def _softmax(x, axis=-1):
    return torch.softmax(x, dim=axis)

def _gelu(x):
    return torch.nn.functional.gelu(x, approximate='tanh')

def _silu(x):
    return torch.nn.functional.silu(x)

def _sigmoid(x):
    return torch.sigmoid(x)

def _layernorm(x, axis=-1, eps=1e-05):
    m = x.mean(dim=axis, keepdim=True)
    v = x.var(dim=axis, keepdim=True, unbiased=False)
    return (x - m) / torch.sqrt(v + eps)

def _scatter_add(tgt, idx, src, axis=0):
    return tgt.clone().index_add_(axis, idx, src)

def _segment_sum(src, seg, n):
    out = torch.zeros((n,) + src.shape[1:], dtype=src.dtype)
    return out.index_add_(0, seg, src)

def _pad(x, pw):
    flat = tuple((v for pair in reversed(pw) for v in pair))
    return torch.nn.functional.pad(x, flat)
kernel_name = 'adaLN_cond__sliding_block_cached__glu_gated_geglu__decode'

def setup_inputs():

    _w = lambda a: (lambda t: t.to(torch.bfloat16) if t.is_floating_point() else t)(torch.as_tensor(a))

    def _A_setup():
        B, Sq, D = (4, 1, 576)
        Hq, Hkv, Sk, Dh = (32, 16, 4096, 128)
        assert Hq % Hkv == 0, (Hq, Hkv)
        return {'x': _w((lambda *s: torch.randn(*s, dtype=torch.bfloat16) * 0.05)(B, Sq, D)), 'k_cache': _w((lambda *s: torch.randn(*s, dtype=torch.bfloat16) * 0.8)(B, Hkv, Sk, Dh)), 'v_cache': _w((lambda *s: torch.randn(*s, dtype=torch.bfloat16) * 3.2)(B, Hkv, Sk, Dh)), 'wq': _w((lambda *s: torch.randn(*s, dtype=torch.bfloat16) * 0.8)(D, Hq * Dh) * D ** (-0.5)), 'wo': _w((lambda *s: torch.randn(*s, dtype=torch.bfloat16) * 3.2)(Hq * Dh, D) * (Hq * Dh) ** (-0.5))}
    _A_in = _A_setup()

    def _B_setup():
        B, S, Dm, Df = (4, 1, 576, 4608)
        return {'x': _w((lambda *s: torch.randn(*s, dtype=torch.bfloat16) * 0.05)(B, S, Dm)), 'w_gate': _w((lambda *s: torch.randn(*s, dtype=torch.bfloat16) * 3.2)(Dm, Df) * Dm ** (-0.5)), 'w_up': _w((lambda *s: torch.randn(*s, dtype=torch.bfloat16) * 3.2)(Dm, Df) * Dm ** (-0.5)), 'w_down': _w((lambda *s: torch.randn(*s, dtype=torch.bfloat16) * 3.2)(Df, Dm) * Df ** (-0.5))}
    _B_in = _B_setup()
    return {'A_x': _A_in['x'], 'A_k_cache': _A_in['k_cache'], 'A_v_cache': _A_in['v_cache'], 'A_wq': _A_in['wq'], 'A_wo': _A_in['wo'], 'B_x': _B_in['x'], 'B_w_gate': _B_in['w_gate'], 'B_w_up': _B_in['w_up'], 'B_w_down': _B_in['w_down'], 'c': _w((lambda *s: torch.randn(*s, dtype=torch.bfloat16) * 0.4)(4, 576) * 8.0), 'w_mod': _w((lambda *s: torch.randn(*s, dtype=torch.bfloat16) * 0.4)(576, 6 * 576) * 576 ** (-0.5) * 8.0)}

def reference(A_x, A_k_cache, A_v_cache, A_wq, A_wo, B_x, B_w_gate, B_w_up, B_w_down, c, w_mod):

    def _A_ref(x, k_cache, v_cache, wq, wo):
        B, Sq, D = x.shape
        Hq, Dh = (32, 128)
        Hkv, Sk = (k_cache.shape[1], k_cache.shape[2])
        W = min(4096, max(256, Sk // 4))
        rep = Hq // Hkv
        q = (lambda x, *d: x.permute(*d))((x @ wq).reshape(B, Sq, Hq, Dh), 0, 2, 1, 3)
        k = (lambda x, n, axis: torch.repeat_interleave(x, n, dim=axis))(k_cache[:, :, Sk - W:, :], rep, axis=1)
        v = (lambda x, n, axis: torch.repeat_interleave(x, n, dim=axis))(v_cache[:, :, Sk - W:, :], rep, axis=1)
        scores = torch.einsum('bhqd,bhkd->bhqk', q, k) * Dh ** (-0.5)
        p = _softmax(scores, axis=-1)
        o = torch.einsum('bhqk,bhkd->bhqd', p, v)
        return (lambda x, *d: x.permute(*d))(o, 0, 2, 1, 3).reshape(B, Sq, Hq * Dh) @ wo

    def _B_ref(x, w_gate, w_up, w_down):
        g = torch.einsum('bsd,df->bsf', x, w_gate)
        u = torch.einsum('bsd,df->bsf', x, w_up)
        h = _gelu(g) * u
        return torch.einsum('bsf,fd->bsd', h, w_down)
    x = A_x
    mod = (_silu(c) @ w_mod).reshape(c.shape[0], 6, 1, -1)
    sa, ca, ga, sb, cb, gb = (mod[:, 0].clone(), mod[:, 1].clone(), mod[:, 2].clone(), mod[:, 3].clone(), mod[:, 4].clone(), mod[:, 5].clone())
    h = _layernorm(x, axis=-1) * (1 + ca) + sa
    x = x + ga * _A_ref(h, A_k_cache, A_v_cache, A_wq, A_wo)
    h = _layernorm(x, axis=-1) * (1 + cb) + sb
    x = x + gb * _B_ref(h, B_w_gate, B_w_up, B_w_down)
    return x
```

```python
import sys
NAME = "adaLN_cond__sliding_block_cached__glu_gated_geglu__decode"
HDR = open("cdna_kernels/%s.s.ref" % NAME).read().split("; Override launch")[0]
L = []
A = L.append
WS_MOD, WS_Q, WS_O, WS_X2, WS_ACT = 0, 65536, 131072, 196608, 262144
ARG = dict(x=0, k=8, v=16, wq=24, wo=32, bx=40, wg=48, wu=56, wd=64, c=72, wm=80, out=88, dbg=96, ws=104)

def srd(s, arg, nbytes):
    A("s_load_dwordx2 s[%d:%d], s[0:1], %d" % (s, s+1, ARG[arg]))
    A("s_mov_b32 s%d, %d" % (s+2, nbytes))
    A("s_mov_b32 s%d, 0x20000" % (s+3))

def rbf(v, t):
    A("v_cvt_pk_bf16_f32 v%d, v%d, v%d" % (t, v, v))
    A("v_lshlrev_b32 v%d, 16, v%d" % (v, t))

def wave_reduce(v, op, t1, t2):
    for m in [1,2,4,8,16,32]:
        A("v_xor_b32 v%d, %d, v250" % (t1, m*4))
        A("ds_bpermute_b32 v%d, v%d, v%d" % (t2, t1, v))
        A("s_waitcnt lgkmcnt(0)")
        A("%s v%d, v%d, v%d" % (op, v, v, t2))

def begin(name, nwg):
    A(".p2align 8\n.globl %s\n.type %s,@function\n%s:" % (name, name, name))
    A("s_cmp_ge_u32 s2, %d" % nwg)
    A("s_cbranch_scc0 %s_go" % name)
    A("s_endpgm")
    A("%s_go:" % name)
    A("v_and_b32 v251, 63, v0")
    A("v_lshlrev_b32 v250, 2, v251")
    A("v_lshrrev_b32 v252, 6, v0")

def end(name):
    A("s_waitcnt vmcnt(0) lgkmcnt(0)")
    A("s_endpgm")

def desc(name):
    A(".amdhsa_kernel %s\n  .amdhsa_next_free_vgpr 256\n  .amdhsa_next_free_sgpr 96\n  .amdhsa_accum_offset 256" % name)
    A("  .amdhsa_group_segment_fixed_size 0\n  .amdhsa_kernarg_size 112\n  .amdhsa_user_sgpr_count 2")
    A("  .amdhsa_user_sgpr_kernarg_segment_ptr 1\n  .amdhsa_system_sgpr_workgroup_id_x 1\n  .amdhsa_float_denorm_mode_32 3\n.end_amdhsa_kernel")

RED = 73728
def gemv(tag, K, pitch, sw, vout):
    kper = K // 8
    A("v_and_b32 v1, 31, v0")
    A("v_lshrrev_b32 v2, 5, v0")
    A("s_mov_b32 s40, %d" % (kper * pitch))
    A("v_mul_lo_u32 v3, v2, s40")
    A("v_lshlrev_b32 v4, 2, v1")
    A("v_add_u32 v3, v3, v4")
    A("s_lshl_b32 s41, s2, 7")
    A("v_add_u32 v3, s41, v3")
    A("v_mul_u32_u24 v4, %d, v2" % (kper * 16))
    for j in range(8):
        A("s_mov_b32 s%d, %d" % (44 + j, j * pitch))
        A("v_mov_b32 v%d, 0" % (8 + j))
    A("s_mov_b32 s42, %d" % (kper // 8))
    A("%s_loop:" % tag)
    for j in range(8):
        A("buffer_load_dword v%d, v3, s[%d:%d], s%d offen" % (16 + j, sw, sw + 3, 44 + j))
    for j in range(8):
        A("ds_read_b128 v[%d:%d], v4 offset:%d" % (24 + 4*j, 27 + 4*j, 16*j))
    A("s_waitcnt vmcnt(0) lgkmcnt(0)")
    for j in range(8):
        A("v_lshlrev_b32 v5, 16, v%d" % (16 + j))
        A("v_and_b32 v6, 0xffff0000, v%d" % (16 + j))
        for b in range(4):
            A("v_fmac_f32 v%d, v%d, v5" % (8 + 2*b, 24 + 4*j + b))
            A("v_fmac_f32 v%d, v%d, v6" % (9 + 2*b, 24 + 4*j + b))
    A("v_add_u32 v3, %d, v3" % (8 * pitch))
    A("v_add_u32 v4, 128, v4")
    A("s_sub_u32 s42, s42, 1")
    A("s_cmp_lg_u32 s42, 0")
    A("s_cbranch_scc1 %s_loop" % tag)
    A("v_lshlrev_b32 v5, 5, v0")
    A("v_add_u32 v5, %d, v5" % RED)
    A("s_barrier")
    A("ds_write_b128 v5, v[8:11]")
    A("ds_write_b128 v5, v[12:15] offset:16")
    A("s_waitcnt lgkmcnt(0)")
    A("s_barrier")
    A("v_lshrrev_b32 v5, 1, v251")
    A("v_lshlrev_b32 v5, 5, v5")
    A("v_lshlrev_b32 v6, 3, v252")
    A("v_add_u32 v5, v5, v6")
    A("v_and_b32 v6, 1, v251")
    A("v_lshlrev_b32 v6, 2, v6")
    A("v_add_u32 v5, v5, v6")
    A("v_add_u32 v5, %d, v5" % RED)
    for g in range(8):
        A("ds_read_b32 v%d, v5 offset:%d" % (16 + g, g * 1024))
    A("s_waitcnt lgkmcnt(0)")
    A("v_add_f32 v%d, v16, v17" % vout)
    for g in range(2, 8):
        A("v_add_f32 v%d, v%d, v%d" % (vout, vout, 16 + g))
    rbf(vout, 5)

def col_off(vd, rowlen, base):
    A("v_mul_u32_u24 v%d, %d, v252" % (vd, rowlen * 4))
    A("s_lshl_b32 s41, s2, 8")
    A("s_add_u32 s41, s41, %d" % base)
    A("v_add_u32 v%d, s41, v%d" % (vd, vd))
    A("v_add_u32 v%d, v250, v%d" % (vd, vd))

def stage_ln(xsrc_bf16, sx, xbase, mod_s, mod_c):
    if xsrc_bf16:
        A("v_mul_u32_u24 v1, 1152, v252")
        A("v_lshlrev_b32 v2, 1, v251")
        A("v_add_u32 v1, v1, v2")
        for j in range(9):
            A("buffer_load_ushort v%d, v1, s[%d:%d], 0 offen offset:%d" % (70 + j, sx, sx + 3, 128 * j))
        A("s_waitcnt vmcnt(0)")
        for j in range(9):
            A("v_lshlrev_b32 v%d, 16, v%d" % (70 + j, 70 + j))
    else:
        A("v_mul_u32_u24 v1, 2304, v252")
        A("v_add_u32 v1, v1, v250")
        A("v_add_u32 v1, %d, v1" % xbase)
        for j in range(9):
            A("buffer_load_dword v%d, v1, s[%d:%d], 0 offen offset:%d" % (70 + j, sx, sx + 3, 256 * j))
        A("s_waitcnt vmcnt(0)")
    A("v_mul_u32_u24 v1, %d, v252" % (3456 * 4))
    A("v_add_u32 v1, v1, v250")
    A("v_add_u32 v2, %d, v1" % (WS_MOD + mod_s * 2304))
    A("v_add_u32 v3, %d, v1" % (WS_MOD + mod_c * 2304))
    for j in range(9):
        A("buffer_load_dword v%d, v2, s[8:11], 0 offen offset:%d" % (80 + j, 256 * j))
        A("buffer_load_dword v%d, v3, s[8:11], 0 offen offset:%d" % (90 + j, 256 * j))
    A("v_mov_b32 v4, v70")
    for j in range(1, 9):
        A("v_add_f32 v4, v4, v%d" % (70 + j))
    wave_reduce(4, "v_add_f32", 5, 6)
    A("v_mul_f32 v4, %s, v4" % hexf(1.0 / 576))
    A("v_mov_b32 v7, 0")
    for j in range(9):
        A("v_sub_f32 v5, v%d, v4" % (70 + j))
        A("v_fmac_f32 v7, v5, v5")
    wave_reduce(7, "v_add_f32", 5, 6)
    A("v_mul_f32 v7, %s, v7" % hexf(1.0 / 576))
    rbf(4, 5); rbf(7, 5)
    A("v_add_f32 v7, %s, v7" % hexf(1e-5))
    rbf(7, 5)
    A("v_sqrt_f32 v7, v7")
    A("s_nop 0")
    rbf(7, 5)
    A("v_rcp_f32 v7, v7")
    A("s_waitcnt vmcnt(0)")
    A("v_lshlrev_b32 v1, 4, v251")
    A("v_lshlrev_b32 v2, 2, v252")
    A("v_add_u32 v1, v1, v2")
    for j in range(9):
        A("v_sub_f32 v5, v%d, v4" % (70 + j)); rbf(5, 6)
        A("v_mul_f32 v5, v5, v7"); rbf(5, 6)
        A("v_add_f32 v8, 1.0, v%d" % (90 + j)); rbf(8, 6)
        A("v_mul_f32 v5, v5, v8"); rbf(5, 6)
        A("v_add_f32 v5, v5, v%d" % (80 + j)); rbf(5, 6)
        A("ds_write_b32 v1, v5 offset:%d" % (1024 * j))
    A("s_waitcnt lgkmcnt(0)")
    A("s_barrier")

def stage_copy(tag, base, rowlen):
    A("v_mul_u32_u24 v1, %d, v252" % (rowlen * 4))
    A("v_add_u32 v1, v1, v250")
    A("v_add_u32 v1, %d, v1" % base)
    A("v_lshlrev_b32 v2, 4, v251")
    A("v_lshlrev_b32 v3, 2, v252")
    A("v_add_u32 v2, v2, v3")
    A("s_mov_b32 s42, %d" % (rowlen // 512))
    A("%s_cp:" % tag)
    for j in range(8):
        A("buffer_load_dword v%d, v1, s[8:11], 0 offen offset:%d" % (16 + j, 256 * j))
    A("s_waitcnt vmcnt(0)")
    for j in range(8):
        A("ds_write_b32 v2, v%d offset:%d" % (16 + j, 1024 * j))
    A("v_add_u32 v1, 2048, v1")
    A("v_add_u32 v2, 8192, v2")
    A("s_sub_u32 s42, s42, 1")
    A("s_cmp_lg_u32 s42, 0")
    A("s_cbranch_scc1 %s_cp" % tag)
    A("s_waitcnt lgkmcnt(0)")
    A("s_barrier")

import struct
def hexf(f):
    return "0x%08x" % struct.unpack("<I", struct.pack("<f", f))[0]
LOG2E = 1.4426950408889634

def build(probe=None):
    L.clear()
    A(HDR.rstrip())
    if probe is not None:
        A("; @launch kernel=probe_kernel grid=(256,1,1) block=(1024,1,1) lds=0")
    A("; @launch kernel=k1_kernel grid=(54,1,1) block=(256,1,1) lds=82944")
    A("; @launch kernel=k2_kernel grid=(64,1,1) block=(256,1,1) lds=82944")
    A("; @launch kernel=k3_kernel grid=(128,1,1) block=(256,1,1) lds=16384")
    A("; @launch kernel=k4_kernel grid=(9,1,1) block=(256,1,1) lds=82944")
    A("; @launch kernel=k5_kernel grid=(72,1,1) block=(256,1,1) lds=82944")
    A("; @launch kernel=k6_kernel grid=(9,1,1) block=(256,1,1) lds=82944")
    A('.amdgcn_target "amdgcn-amd-amdhsa--gfx950"\n.text')
    WSB = 1 << 20
    names = []
    if probe is not None:
        n = "probe_kernel"; names.append(n)
        A(".p2align 8\n.globl %s\n.type %s,@function\n%s:" % (n, n, n))
        A("s_cmp_ge_u32 s2, 256\ns_cbranch_scc0 probe_go\ns_endpgm\nprobe_go:")
        srd(4, "k", 1 << 26); srd(8, "v", 1 << 26)
        A("s_lshr_b32 s20, s2, 2\ns_lshl_b32 s20, s20, 20\ns_and_b32 s21, s2, 3\ns_lshl_b32 s21, s21, 16\ns_add_u32 s20, s20, s21\ns_add_u32 s20, s20, %d" % (3072*256))
        A("v_lshlrev_b32 v1, 4, v0\nv_add_u32 v1, s20, v1")
        A("s_waitcnt lgkmcnt(0)")
        for rep in range(probe[1]):
            for j in range(4):
                A("s_mov_b32 s22, 0x%x" % ((j*16384 - (rep+1)*262144) & 0xffffffff))
                A("v_add_u32 v2, s22, v1")
                A("buffer_load_dwordx4 v[%d:%d], v2, s[4:7], 0 offen %s" % (8 + 8*j, 11 + 8*j, probe[0]))
                A("buffer_load_dwordx4 v[%d:%d], v2, s[8:11], 0 offen %s" % (12 + 8*j, 15 + 8*j, probe[0]))
        A("s_waitcnt vmcnt(0)\ns_endpgm")
    n = "k1_kernel"; names.append(n); begin(n, 54)
    srd(4, "c", 4608); srd(8, "ws", WSB); srd(12, "wm", 576 * 6912)
    A("s_waitcnt lgkmcnt(0)")
    A("v_mul_u32_u24 v1, 1152, v252\nv_lshlrev_b32 v2, 1, v251\nv_add_u32 v1, v1, v2")
    for j in range(9):
        A("buffer_load_ushort v%d, v1, s[4:7], 0 offen offset:%d" % (70 + j, 128 * j))
    A("v_lshlrev_b32 v1, 4, v251\nv_lshlrev_b32 v2, 2, v252\nv_add_u32 v1, v1, v2")
    A("s_waitcnt vmcnt(0)")
    for j in range(9):
        A("v_lshlrev_b32 v5, 16, v%d" % (70 + j))
        A("v_mul_f32 v6, %s, v5" % hexf(-LOG2E))
        A("v_exp_f32 v6, v6\ns_nop 0\nv_add_f32 v6, 1.0, v6\nv_rcp_f32 v6, v6\ns_nop 0\nv_mul_f32 v5, v5, v6")
        rbf(5, 6)
        A("ds_write_b32 v1, v5 offset:%d" % (1024 * j))
    A("s_waitcnt lgkmcnt(0)\ns_barrier")
    gemv("k1", 576, 6912, 12, 62)
    col_off(63, 3456, WS_MOD)
    A("buffer_store_dword v62, v63, s[8:11], 0 offen")
    end(n)
    n = "k2_kernel"; names.append(n); begin(n, 64)
    srd(4, "x", 4608); srd(8, "ws", WSB); srd(12, "wq", 576 * 8192)
    A("s_waitcnt lgkmcnt(0)")
    stage_ln(True, 4, 0, 0, 1)
    gemv("k2", 576, 8192, 12, 62)
    col_off(63, 4096, WS_Q)
    A("buffer_store_dword v62, v63, s[8:11], 0 offen")
    end(n)
    n = "k3_kernel"; names.append(n); begin(n, 128)
    srd(4, "k", 1 << 26); srd(8, "ws", WSB); srd(12, "v", 1 << 26)
    A("s_waitcnt lgkmcnt(0)")
    A("s_lshl_b32 s20, s2, 9\ns_add_u32 s20, s20, %d" % WS_Q)
    A("v_and_b32 v1, 127, v0\nv_lshlrev_b32 v1, 2, v1\nv_add_u32 v2, s20, v1")
    A("buffer_load_dword v3, v2, s[8:11], 0 offen\ns_waitcnt vmcnt(0)\nds_write_b32 v1, v3\ns_waitcnt lgkmcnt(0)\ns_barrier")
    A("v_mov_b32 v1, 0")
    for j in range(32):
        A("ds_read_b128 v[%d:%d], v1 offset:%d" % (120 + 4*j, 123 + 4*j, 16*j))
    A("s_lshr_b32 s21, s2, 1\ns_lshl_b32 s21, s21, 20\ns_add_u32 s21, s21, %d" % (3072 * 256))
    A("v_lshlrev_b32 v2, 8, v0\nv_add_u32 v2, s21, v2")
    A("s_waitcnt lgkmcnt(0)")
    for j in range(4):
        for i in range(16):
            A("buffer_load_dwordx4 v[%d:%d], v2, s[4:7], 0 offen offset:%d" % (20 + 4*i, 23 + 4*i, 16*i))
        A("v_add_u32 v2, 65536, v2")
        A("v_mov_b32 v%d, 0" % (10 + j))
        A("s_waitcnt vmcnt(0)")
        for i in range(64):
            A("v_lshlrev_b32 v5, 16, v%d" % (20 + i))
            A("v_and_b32 v6, 0xffff0000, v%d" % (20 + i))
            A("v_fmac_f32 v%d, v5, v%d" % (10 + j, 120 + 2*i))
            A("v_fmac_f32 v%d, v6, v%d" % (10 + j, 121 + 2*i))
        rbf(10 + j, 5)
        A("v_mul_f32 v%d, %s, v%d" % (10 + j, hexf(128 ** -0.5), 10 + j))
        rbf(10 + j, 5)
    A("v_max_f32 v4, v10, v11\nv_max_f32 v4, v4, v12\nv_max_f32 v4, v4, v13")
    wave_reduce(4, "v_max_f32", 5, 6)
    A("v_lshlrev_b32 v7, 2, v252")
    A("ds_write_b32 v7, v4 offset:512\ns_waitcnt lgkmcnt(0)\ns_barrier")
    A("ds_read_b128 v[20:23], v1 offset:512\ns_waitcnt lgkmcnt(0)")
    A("v_max_f32 v4, v20, v21\nv_max_f32 v4, v4, v22\nv_max_f32 v4, v4, v23")
    for j in range(4):
        A("v_sub_f32 v%d, v%d, v4" % (10 + j, 10 + j))
        A("v_mul_f32 v%d, %s, v%d" % (10 + j, hexf(LOG2E), 10 + j))
        A("v_exp_f32 v%d, v%d" % (10 + j, 10 + j))
    A("s_nop 0\nv_add_f32 v4, v10, v11\nv_add_f32 v4, v4, v12\nv_add_f32 v4, v4, v13")
    wave_reduce(4, "v_add_f32", 5, 6)
    A("ds_write_b32 v7, v4 offset:528\ns_waitcnt lgkmcnt(0)\ns_barrier")
    A("ds_read_b128 v[20:23], v1 offset:528\ns_waitcnt lgkmcnt(0)")
    A("v_add_f32 v4, v20, v21\nv_add_f32 v4, v4, v22\nv_add_f32 v4, v4, v23\nv_rcp_f32 v4, v4\ns_nop 0")
    A("v_lshlrev_b32 v7, 2, v0")
    for j in range(4):
        A("v_mul_f32 v%d, v%d, v4" % (10 + j, 10 + j)); rbf(10 + j, 5)
        A("ds_write_b32 v7, v%d offset:%d" % (10 + j, 1024 + 1024 * j))
    A("s_waitcnt lgkmcnt(0)\ns_barrier")
    A("v_lshlrev_b32 v2, 16, v252\nv_add_u32 v2, s21, v2\nv_add_u32 v2, v2, v250")
    A("v_lshlrev_b32 v3, 10, v252\nv_add_u32 v3, 1024, v3")
    A("v_mov_b32 v8, 0\nv_mov_b32 v9, 0\ns_mov_b32 s42, 32")
    A("k3_pv:")
    for j in range(8):
        A("buffer_load_dword v%d, v2, s[12:15], 0 offen offset:%d" % (16 + j, 256 * j))
    A("ds_read_b128 v[24:27], v3\nds_read_b128 v[28:31], v3 offset:16")
    A("s_waitcnt vmcnt(0) lgkmcnt(0)")
    for j in range(8):
        A("v_lshlrev_b32 v5, 16, v%d\nv_and_b32 v6, 0xffff0000, v%d" % (16 + j, 16 + j))
        A("v_fmac_f32 v8, v5, v%d\nv_fmac_f32 v9, v6, v%d" % (24 + j, 24 + j))
    A("v_add_u32 v2, 2048, v2\nv_add_u32 v3, 32, v3\ns_sub_u32 s42, s42, 1\ns_cmp_lg_u32 s42, 0\ns_cbranch_scc1 k3_pv")
    A("v_lshlrev_b32 v7, 3, v0")
    A("ds_write_b64 v7, v[8:9] offset:8192\ns_waitcnt lgkmcnt(0)\ns_barrier")
    A("v_and_b32 v1, 127, v0\nv_lshlrev_b32 v1, 2, v1")
    for g in range(4):
        A("ds_read_b32 v%d, v1 offset:%d" % (16 + g, 8192 + 512 * g))
    A("s_waitcnt lgkmcnt(0)")
    A("v_add_f32 v4, v16, v17\nv_add_f32 v4, v4, v18\nv_add_f32 v4, v4, v19")
    rbf(4, 5)
    A("s_lshl_b32 s20, s2, 9\ns_add_u32 s20, s20, %d" % WS_O)
    A("v_add_u32 v2, s20, v1")
    A("buffer_store_dword v4, v2, s[8:11], 0 offen")
    end(n)
    n = "k4_kernel"; names.append(n); begin(n, 9)
    srd(4, "x", 4608); srd(8, "ws", WSB); srd(12, "wo", 4096 * 1152)
    A("s_waitcnt lgkmcnt(0)")
    stage_copy("k4", WS_O, 4096)
    gemv("k4", 4096, 1152, 12, 62)
    col_off(63, 3456, WS_MOD + 2 * 2304)
    A("buffer_load_dword v64, v63, s[8:11], 0 offen")
    col_off(63, 576, 0)
    A("v_lshrrev_b32 v65, 1, v63")
    A("buffer_load_ushort v65, v65, s[4:7], 0 offen")
    A("v_add_u32 v63, %d, v63" % WS_X2)
    A("s_waitcnt vmcnt(0)")
    A("v_lshlrev_b32 v65, 16, v65")
    A("v_mul_f32 v62, v62, v64"); rbf(62, 5)
    A("v_add_f32 v62, v62, v65"); rbf(62, 5)
    A("buffer_store_dword v62, v63, s[8:11], 0 offen")
    end(n)
    n = "k5_kernel"; names.append(n); begin(n, 72)
    srd(4, "wu", 576 * 9216); srd(8, "ws", WSB); srd(12, "wg", 576 * 9216)
    A("s_waitcnt lgkmcnt(0)")
    stage_ln(False, 8, WS_X2, 3, 4)
    gemv("k5g", 576, 9216, 12, 62)
    gemv("k5u", 576, 9216, 4, 61)
    A("v_mul_f32 v5, v62, v62")
    A("v_mul_f32 v5, %s, v5" % hexf(0.044715))
    A("v_add_f32 v5, 1.0, v5")
    A("v_mul_f32 v5, v5, v62")
    A("v_mul_f32 v5, %s, v5" % hexf(-2.0 * 0.7978845608028654 * LOG2E))
    A("v_exp_f32 v5, v5\ns_nop 0\nv_add_f32 v5, 1.0, v5\nv_rcp_f32 v5, v5\ns_nop 0\nv_mul_f32 v62, v62, v5")
    rbf(62, 5)
    A("v_mul_f32 v62, v62, v61"); rbf(62, 5)
    col_off(63, 4608, WS_ACT)
    A("buffer_store_dword v62, v63, s[8:11], 0 offen")
    end(n)
    n = "k6_kernel"; names.append(n); begin(n, 9)
    srd(4, "out", 4608); srd(8, "ws", WSB); srd(12, "wd", 4608 * 1152)
    A("s_waitcnt lgkmcnt(0)")
    stage_copy("k6", WS_ACT, 4608)
    gemv("k6", 4608, 1152, 12, 62)
    col_off(63, 3456, WS_MOD + 5 * 2304)
    A("buffer_load_dword v64, v63, s[8:11], 0 offen")
    col_off(63, 576, 0)
    A("v_add_u32 v66, %d, v63" % WS_X2)
    A("buffer_load_dword v65, v66, s[8:11], 0 offen")
    A("v_lshrrev_b32 v63, 1, v63")
    A("s_waitcnt vmcnt(0)")
    A("v_mul_f32 v62, v62, v64"); rbf(62, 5)
    A("v_add_f32 v62, v62, v65")
    A("v_cvt_pk_bf16_f32 v62, v62, v62")
    A("buffer_store_short v62, v63, s[4:7], 0 offen")
    end(n)
    A('.section .rodata,"a"')
    for n in names:
        A(".p2align 6")
        if n == "probe_kernel":
            A(".amdhsa_kernel %s\n  .amdhsa_next_free_vgpr 128\n  .amdhsa_next_free_sgpr 96\n  .amdhsa_accum_offset 128" % n)
            A("  .amdhsa_group_segment_fixed_size 0\n  .amdhsa_kernarg_size 112\n  .amdhsa_user_sgpr_count 2")
            A("  .amdhsa_user_sgpr_kernarg_segment_ptr 1\n  .amdhsa_system_sgpr_workgroup_id_x 1\n.end_amdhsa_kernel")
        else:
            desc(n)
    return "\n".join(L) + "\n"

if __name__ == "__main__":
    open("simple.s", "w").write(build())
    open("simple_p_nt.s", "w").write(build(("nt", 2)))
    open("simple_p_def.s", "w").write(build(("", 2)))
    open("simple_p_0.s", "w").write(build(("", 0)))
```

```python
import struct, sys
NAME = "adaLN_cond__sliding_block_cached__glu_gated_geglu__decode"
HDR = open("cdna_kernels/%s.s.ref" % NAME).read().split("; Override launch")[0]

def hexf(f):
    return "0x%08x" % struct.unpack("<I", struct.pack("<f", f))[0]
LOG2E = 1.4426950408889634

W_MOD, W_Q2, W_O3, W_A4, W_X2, W_D6, W_STAMP = 4096, 65536, 131072, 393216, 786432, 1048576, 4194304
WS_BYTES = 8 << 20
KREG, VREG, MISC = 0, 73728, 147456
F_PROG, F_FEFREE, F_KFREE, F_VFREE, F_QF, F_A1, F_A2, F_R1, F_R2, F_H2, F_R3, F_R4, F_R5 = [4 * i for i in range(13)]
WMAX, WSUM, QL, PL, OL, AL, ACT = 256, 320, 512, 1280, 2560, 3840, 4096
ACTP = 1344
G_K0, G_V0, G_L0 = 18, 34, 50

S_X, S_K, S_V, S_WQ, S_WO, S_WG, S_WU, S_WD, S_C, S_WM, S_OUT, S_WS = 4, 6, 8, 10, 12, 16, 18, 20, 22, 24, 26, 30
S_XC, S_J, S_W = 32, 33, 34
S_SRD = 36
S_TAG = 40
S_CNT = 41
V_L, V_N, V_G, V_F, V_ONE, V_T = 0, 1, 2, 3, 4, 5
V_ST = 167


class Gen:
    def __init__(self, **opt):
        self.o = dict(Dhi=32, Dlo=16, Dlate=32, rot=5, dbg=False, spin=400000, warm=True, x2wait=62, sleep=1)
        self.o.update(opt)
        self.L = []
        self.n = 0

    def A(self, s):
        self.L.append(s)

    def lbl(self, p="L"):
        self.n += 1
        return "%s_%d" % (p, self.n)

    def stamp(self, i):
        if self.o["dbg"]:
            self.A("s_memrealtime s[90:91]\ns_waitcnt lgkmcnt(0)\nv_writelane_b32 v%d, s90, %d" % (V_ST, i))

    def wait_lds(self, off, thr, sleep=None):
        A = self.A
        l, d = self.lbl("W"), self.lbl("D")
        A("%s:" % l)
        A("ds_read_b32 v%d, v%d offset:%d" % (V_T, V_F, off))
        A("s_waitcnt lgkmcnt(0)")
        A("v_cmp_le_i32 vcc, %s, v%d" % (thr, V_T))
        A("s_cbranch_vccnz %s" % d)
        A("s_sub_u32 s%d, s%d, 1" % (S_CNT, S_CNT))
        A("s_cbranch_scc1 L_bail")
        sl = self.o["sleep"] if sleep is None else sleep
        if sl:
            A("s_sleep %d" % sl)
        A("s_branch %s" % l)
        A("%s:" % d)

    def signal(self, off):
        A = self.A
        A("s_mov_b64 exec, 1")
        A("ds_add_u32 v%d, v%d offset:%d" % (V_F, V_ONE, off))
        A("s_mov_b64 exec, -1")

    def gather(self, loads, tagpos, acc, sleep=0):
        A = self.A
        l = self.lbl("G")
        A("%s:" % l)
        for d, va, so, im in loads:
            A("buffer_load_dwordx4 v[%d:%d], v%d, s[%d:%d], %s offen offset:%d sc1" % (d, d + 3, va, S_SRD, S_SRD + 3, so, im))
        A("s_sub_u32 s%d, s%d, 16" % (S_CNT, S_CNT))
        A("s_cbranch_scc1 L_bail")
        for i, (d, va, so, im) in enumerate(loads):
            A("s_waitcnt vmcnt(%d)" % (len(loads) - 1 - i))
            if i == 0:
                A("v_xor_b32 v%d, s%d, v%d" % (acc, S_TAG, d + tagpos))
            else:
                A("v_bitop3_b32 v%d, v%d, v%d, s%d bitop3:0xf6" % (acc, acc, d + tagpos, S_TAG))
        A("v_cmp_ne_u32 vcc, 0, v%d" % acc)
        if sleep:
            d2 = self.lbl("D")
            A("s_cbranch_vccz %s" % d2)
            A("s_sleep %d" % sleep)
            A("s_branch %s" % l)
            A("%s:" % d2)
        else:
            A("s_cbranch_vccnz %s" % l)

    def rbf(self, v, t):
        self.A("v_cvt_pk_bf16_f32 v%d, v%d, v%d" % (t, v, v))
        self.A("v_lshlrev_b32 v%d, 16, v%d" % (v, t))

    def rbf2(self, a, b, t):
        self.A("v_cvt_pk_bf16_f32 v%d, v%d, v%d" % (t, a, b))
        self.A("v_lshlrev_b32 v%d, 16, v%d" % (a, t))
        self.A("v_and_b32 v%d, 0xffff0000, v%d" % (b, t))

    def unpack(self, src, lo, hi):
        self.A("v_lshlrev_b32 v%d, 16, v%d" % (lo, src))
        self.A("v_and_b32 v%d, 0xffff0000, v%d" % (hi, src))

    def allreduce(self, regs, op, tmps, steps=("q1", "q2", "hm", "m", "p16", "p32")):
        A = self.A
        dpp = dict(q1="quad_perm:[1,0,3,2]", q2="quad_perm:[2,3,0,1]", hm="row_half_mirror", m="row_mirror", r8="row_ror:8")
        for s in steps:
            if s in dpp:
                if len(regs) < 3:
                    A("s_nop %d" % (2 - len(regs)))
                for r in regs:
                    A("%s_dpp v%d, v%d, v%d %s row_mask:0xf bank_mask:0xf" % (op, r, r, r, dpp[s]))
            else:
                for r, t in zip(regs, tmps):
                    A("v_mov_b32 v%d, v%d" % (t, r))
                A("s_nop 1")
                for r, t in zip(regs, tmps):
                    A("v_permlane%s_swap_b32 v%d, v%d" % (s[1:], r, t))
                for r, t in zip(regs, tmps):
                    A("%s v%d, v%d, v%d" % (op, r, r, t))

    def seg(self, D, groups, step, lds, mask=None, publish=True, waits=True):
        A = self.A
        lb = self.lbl("S")
        if lds is not None:
            A("s_mov_b32 s46, %s" % lds)
        A("s_mov_b32 s47, %d" % groups)
        A("%s:" % lb)
        A("s_mov_b32 m0, s46")
        A("s_add_u32 s50, s44, s45")
        for j in range(4):
            if waits:
                A("s_waitcnt vmcnt(%d)" % (D - 1))
            r = 52 if j < 2 else 56
            A("buffer_load_dwordx4 v%d, s[%d:%d], s50 offen offset:%d nt lds" % (10 + j, r, r + 3, 1024 * j))
        if publish:
            A("s_sub_i32 s51, s48, %d" % (D // 4 - 1))
            A("s_max_i32 s49, s49, s51")
            A("v_mov_b32 v%d, s49" % V_T)
            A("ds_write_b32 v%d, v%d offset:%d" % (V_F, V_T, F_PROG))
        A("s_add_u32 s48, s48, 1")
        A("s_add_u32 s45, s45, %s" % step)
        if mask:
            A("s_and_b32 s45, s45, %d" % mask)
        A("s_add_u32 s46, s46, 4096")
        A("s_sub_u32 s47, s47, 1")
        A("s_cmp_lg_u32 s47, 0")
        A("s_cbranch_scc1 %s" % lb)

    def drain(self, D):
        A = self.A
        for k in range(D // 4 - 1, -1, -1):
            A("s_waitcnt vmcnt(%d)" % (4 * k))
            A("s_sub_i32 s51, s48, %d" % k)
            A("s_max_i32 s49, s49, s51")
            A("v_mov_b32 v%d, s49" % V_T)
            A("ds_write_b32 v%d, v%d offset:%d" % (V_F, V_T, F_PROG))

    def wait_free(self, off, D):
        A = self.A
        d = self.lbl("D")
        A("ds_read_b32 v%d, v%d offset:%d" % (V_T, V_F, off))
        A("s_waitcnt lgkmcnt(0)")
        A("v_cmp_le_i32 vcc, 4, v%d" % V_T)
        A("s_cbranch_vccnz %s" % d)
        self.drain(D)
        self.wait_lds(off, 4)
        A("%s:" % d)

    def srd2(self, a, b, nbytes, bias=0):
        A = self.A
        for dst, src in ((52, a), (56, b)):
            if bias:
                A("s_sub_u32 s%d, s%d, %d\ns_subb_u32 s%d, s%d, 0" % (dst, src, bias, dst + 1, src + 1))
            else:
                A("s_mov_b32 s%d, s%d\ns_mov_b32 s%d, s%d" % (dst, src, dst + 1, src + 1))
            A("s_mov_b32 s%d, %d" % (dst + 2, nbytes + bias))

    def unit_voff(self, pitch):
        A = self.A
        A("v_lshrrev_b32 v6, 3, v0")
        A("v_and_b32 v7, 2, v6")
        A("v_and_b32 v8, 7, v0")
        A("v_xor_b32 v7, v7, v8")
        A("v_lshlrev_b32 v7, 4, v7")
        A("v_mul_lo_u32 v6, v6, %s" % pitch)
        A("s_lshl_b32 s50, %s, 3" % pitch)
        A("s_sub_u32 s50, s50, 1024")
        A("v_add_u32 v10, v6, v7")
        A("v_xor_b32 v7, 64, v7")
        A("v_add3_u32 v11, v6, v7, s50")
        A("s_lshl_b32 s50, s50, 1")
        A("v_add_u32 v12, s50, v10")
        A("v_add_u32 v13, s50, v11")

    def kv_voff(self, isK):
        A = self.A
        for j in range(4):
            if isK:
                A("v_add_u32 v6, %d, v%d" % (4 * j, V_G))
                A("v_xor_b32 v6, v6, v%d" % V_N)
            else:
                A("v_lshlrev_b32 v6, 1, v%d" % V_G)
                if j >> 1:
                    A("v_or_b32 v6, 8, v6")
                A("v_xor_b32 v6, v6, v%d" % V_N)
            A("v_lshlrev_b32 v6, 4, v6")
            A("v_lshl_add_u32 v%d, v%d, 8, v6" % (10 + j, V_G))

    def kv_base(self):
        A = self.A
        A("s_lshr_b32 s44, s2, 2\ns_lshl_b32 s44, s44, 20\ns_and_b32 s50, s2, 3\ns_lshl_b32 s50, s50, 16\ns_add_u32 s44, s44, s50")
        A("s_add_u32 s44, s44, %d" % (3072 * 256))
        A("s_mul_i32 s60, s2, %d\ns_and_b32 s60, s60, 15\ns_lshl_b32 s60, s60, 12" % self.o["rot"])

    def loader(self):
        A, o = self.A, self.o
        Dhi, Dlo, Dlate = o["Dhi"], o["Dlo"], o["Dlate"]
        A("s_mov_b32 s55, 0x20000\ns_mov_b32 s59, 0x20000")
        A("s_cmp_ge_u32 s%d, 14" % S_J)
        A("s_cbranch_scc1 LD_mlp")
        A("s_cmp_ge_u32 s%d, 6" % S_J)
        A("s_cbranch_scc1 LD_q")
        A("s_mul_i32 s44, s%d, 6\ns_add_u32 s44, s44, s%d\ns_mov_b32 s61, 6912" % (S_XC, S_J))
        A("s_waitcnt lgkmcnt(0)")
        self.srd2(S_WM, S_WM, 576 * 6912)
        A("s_branch LD_fe")
        A("LD_q:")
        A("s_lshl_b32 s44, s%d, 3\ns_add_u32 s44, s44, s%d\ns_sub_u32 s44, s44, 6\ns_mov_b32 s61, 8192" % (S_XC, S_J))
        A("s_waitcnt lgkmcnt(0)")
        self.srd2(S_WQ, S_WQ, 576 * 8192)
        A("LD_fe:")
        A("s_lshl_b32 s44, s44, 7\ns_mov_b32 s45, 0\ns_lshl_b32 s62, s61, 5\ns_mov_b32 s48, 0\ns_mov_b32 s49, 0")
        self.unit_voff("s61")
        self.seg(Dhi, Dhi // 4, "s62", VREG, publish=False, waits=False)
        A("s_barrier")
        self.seg(Dhi, 18 - Dhi // 4, "s62", None)
        self.stamp(1)
        self.kv_base()
        self.kv_voff(True)
        self.srd2(S_K, S_K, 1 << 26)
        A("s_mov_b32 s45, s60")
        self.seg(Dhi, 16, 4096, KREG, 0xffff)
        self.stamp(2)
        self.kv_voff(False)
        self.srd2(S_V, S_V, 1 << 26)
        A("s_mov_b32 s45, s60")
        self.wait_free(F_FEFREE, Dhi)
        self.seg(Dhi, 16, 4096, VREG, 0xffff)
        self.stamp(3)
        A("s_cmp_ge_u32 s2, 102")
        A("s_cbranch_scc1 LD_fin")
        self.wait_free(F_KFREE, Dhi)
        A("s_cmp_ge_u32 s%d, 12" % S_J)
        A("s_cbranch_scc1 LD_late")
        A("s_mov_b32 s61, 1152")
        self.unit_voff("s61")
        self.srd2(S_WO, S_WO, 4096 * 1152)
        A("s_and_b32 s44, s%d, 3\ns_lshl_b32 s50, s%d, 2\ns_add_u32 s44, s44, s50\ns_mul_i32 s44, s44, %d" % (S_J, S_XC, 128 * 1152))
        A("s_lshr_b32 s50, s%d, 2\ns_mul_i32 s50, s50, 384\ns_add_u32 s44, s44, s50" % S_J)
        A("s_mov_b32 s46, %d\ns_mov_b32 s63, 3" % KREG)
        A("LD_wo:")
        A("s_mov_b32 s45, 0")
        self.seg(Dlate, 4, 32 * 1152, None)
        A("s_add_u32 s44, s44, 128\ns_sub_u32 s63, s63, 1\ns_cmp_lg_u32 s63, 0\ns_cbranch_scc1 LD_wo")
        A("s_branch LD_fin")
        A("LD_late:")
        A("s_mov_b32 s61, 6912")
        self.unit_voff("s61")
        self.srd2(S_WM, S_WM, 576 * 6912)
        A("s_add_u32 s44, s%d, 48\ns_lshl_b32 s44, s44, 7\ns_mov_b32 s45, 0" % S_XC)
        self.seg(Dlate, 18, 32 * 6912, KREG)
        A("s_branch LD_fin")
        A("LD_mlp:")
        A("s_mov_b32 s48, %d\ns_mov_b32 s49, %d" % (G_K0, G_K0))
        self.kv_base()
        self.kv_voff(True)
        A("s_waitcnt lgkmcnt(0)")
        self.srd2(S_K, S_K, 1 << 26)
        A("s_mov_b32 s45, s60")
        self.seg(Dlo, Dlo // 4, 4096, KREG, 0xffff, publish=False, waits=False)
        A("s_barrier")
        self.seg(Dlo, 16 - Dlo // 4, 4096, None, 0xffff)
        self.stamp(2)
        self.kv_voff(False)
        self.srd2(S_V, S_V, 1 << 26)
        A("s_mov_b32 s45, s60")
        self.seg(Dlo, 16, 4096, VREG, 0xffff)
        self.stamp(3)
        A("s_mul_i32 s63, s%d, 18\ns_add_u32 s63, s63, s%d\ns_sub_u32 s63, s63, 14" % (S_XC, S_J))
        A("v_lshrrev_b32 v6, 2, v0\ns_movk_i32 s50, 9216\nv_mul_lo_u32 v6, v6, s50")
        A("v_lshrrev_b32 v7, 5, v0\nv_and_b32 v8, 3, v0\nv_xor_b32 v7, v7, v8\nv_lshlrev_b32 v7, 4, v7")
        for j in range(4):
            if j == 2:
                A("v_xor_b32 v7, 32, v7")
            A("v_add_u32 v8, v6, v7")
            A("v_add_u32 v%d, %d, v8" % (10 + j, (j & 1) * 16 * 9216 - j * 1024 + 4096))
        self.srd2(S_WG, S_WU, 576 * 9216, bias=4096)
        A("s_lshl_b32 s44, s63, 6\ns_mov_b32 s45, 0")
        self.wait_free(F_KFREE, Dlo)
        self.seg(Dlate, 18, 32 * 9216, KREG)
        self.stamp(4)
        A("s_mov_b32 s61, 1152")
        self.unit_voff("s61")
        self.srd2(S_WD, S_WD, 4608 * 1152)
        A("s_mul_i32 s44, s63, %d\ns_mov_b32 s45, 0" % (32 * 1152))
        self.wait_free(F_VFREE, Dlate)
        self.seg(Dlate, 9, 128, VREG)
        A("LD_fin:")
        self.stamp(5)
        self.drain(max(Dhi, Dlate))
        self.stamp(6)
        A("s_branch L_exit")

    def unit_tr_addr(self, dst, chi_sgpr_or_imm, base):
        A = self.A
        A("v_lshrrev_b32 v6, 3, v%d" % V_N)
        A("v_and_b32 v7, 1, v%d" % V_G)
        A("v_lshl_or_b32 v6, v7, 1, v6")
        A("v_xor_b32 v6, %s, v6" % chi_sgpr_or_imm)
        A("v_lshlrev_b32 v6, 5, v6")
        A("v_lshrrev_b32 v7, 2, v%d" % V_N)
        A("v_lshl_add_u32 v7, v%d, 3, v7" % V_G)
        A("v_lshl_add_u32 v6, v7, 7, v6")
        A("v_and_b32 v7, 3, v%d" % V_N)
        A("v_lshl_add_u32 v6, v7, 3, v6")
        A("v_add_u32 v%d, %s, v6" % (dst, base))

    def act_addr(self, dst, base, pitch, mask):
        A = self.A
        A("v_and_b32 v6, %d, v%d" % (mask, V_N))
        A("v_mul_u32_u24 v6, %d, v6" % pitch)
        A("v_lshl_add_u32 v6, v%d, 4, v6" % V_G)
        A("v_add_u32 v%d, %d, v6" % (dst, MISC + base))

    def granule_addrs(self, a0, a2, per_tile, per_g, base_sgpr):
        A = self.A
        A("v_lshrrev_b32 v6, 2, v0\nv_mul_u32_u24 v6, %d, v6" % per_tile)
        A("v_and_b32 v7, 3, v0\nv_mul_u32_u24 v7, %d, v7" % per_g)
        A("v_add3_u32 v%d, v6, v7, %s" % (a0, base_sgpr))
        A("v_lshrrev_b32 v6, 2, v%d\nv_mul_u32_u24 v6, %d, v6" % (V_N, per_tile))
        A("v_add3_u32 v%d, v6, v7, %s" % (a2, base_sgpr))

    def load_row3(self, sptr, dst):
        A = self.A
        A("s_mul_i32 s50, s%d, 1152" % S_W)
        A("v_lshl_add_u32 v6, v0, 3, s50")
        A("v_lshl_add_u32 v7, v%d, 3, s50" % V_N)
        A("global_load_dwordx2 v[%d:%d], v6, s[%d:%d]" % (dst, dst + 1, sptr, sptr + 1))
        A("global_load_dwordx2 v[%d:%d], v6, s[%d:%d] offset:512" % (dst + 2, dst + 3, sptr, sptr + 1))
        A("global_load_dwordx2 v[%d:%d], v7, s[%d:%d] offset:1024" % (dst + 4, dst + 5, sptr, sptr + 1))

    def actw_addrs(self, a0, a2):
        A = self.A
        A("s_mul_i32 s50, s%d, %d\ns_add_u32 s50, s50, %d" % (S_W, ACTP, MISC + ACT))
        A("v_lshl_add_u32 v%d, v0, 3, s50" % a0)
        A("v_lshl_add_u32 v%d, v%d, 3, s50" % (a2, V_N))

    def publish_tile(self, acc, base, unit_sgpr):
        A = self.A
        A("s_lshl_b32 s50, %s, 10\ns_lshl_b32 s51, s%d, 8\ns_add_u32 s50, s50, s51\ns_add_u32 s50, s50, %d" % (unit_sgpr, S_W, base))
        A("v_lshlrev_b32 v8, 6, v%d" % V_N)
        A("v_lshl_add_u32 v8, v%d, 4, v8" % V_G)
        A("v_mov_b32 v14, s%d\nv_mov_b32 v15, 0" % S_TAG)
        A("s_nop 4")
        A("v_cvt_pk_bf16_f32 v12, v%d, v%d" % (acc, acc + 1))
        A("v_cvt_pk_bf16_f32 v13, v%d, v%d" % (acc + 2, acc + 3))
        A("s_mov_b32 exec_lo, 0x000f000f\ns_mov_b32 exec_hi, 0x000f000f")
        A("buffer_store_dwordx4 v[12:15], v8, s[%d:%d], s50 offen sc1" % (S_SRD, S_SRD + 3))
        A("s_mov_b64 exec, -1")

    def mod_unit(self, img, g0, sync, unit_sgpr, free):
        A = self.A
        self.load_row3(S_C, 20)
        self.actw_addrs(8, 9)
        self.unit_tr_addr(16, "s%d" % S_W, img)
        A("v_add_u32 v17, 36864, v16")
        self.act_addr(18, ACT, ACTP, 3)
        A("s_waitcnt vmcnt(0)")
        for i in range(6):
            self.unpack(20 + i, 28 + 2 * i, 29 + 2 * i)
        for k in range(12):
            x, e, q = 28 + k, 40 + k, 52 + k
            A("v_mul_f32 v%d, %s, v%d" % (e, hexf(-LOG2E), x))
            A("v_min_f32 v%d, %s, v%d" % (e, hexf(120.0), e))
            A("v_exp_f32 v%d, v%d" % (e, e))
        for k in range(12):
            x, e, q = 28 + k, 40 + k, 52 + k
            A("v_add_f32 v%d, 1.0, v%d" % (e, e))
            A("v_rcp_f32 v%d, v%d" % (q, e))
        for k in range(12):
            x, e, q, y = 28 + k, 40 + k, 52 + k, 64 + k
            A("v_mul_f32 v%d, v%d, v%d" % (y, x, q))
            A("v_fma_f32 v%d, -v%d, v%d, v%d" % (e, y, e, x))
            A("v_fma_f32 v%d, v%d, v%d, v%d" % (y, e, q, y))
        for i in range(6):
            A("v_cvt_pk_bf16_f32 v%d, v%d, v%d" % (20 + i, 64 + 2 * i, 65 + 2 * i))
        A("ds_write_b64 v8, v[20:21]\nds_write_b64 v8, v[22:23] offset:512\nds_write_b64 v9, v[24:25] offset:1024")
        self.signal(sync)
        self.wait_lds(sync, 4)
        for ks in range(18):
            A("ds_read_b128 v[%d:%d], v18 offset:%d" % (32 + 4 * ks, 35 + 4 * ks, 64 * ks))
        for half in range(6):
            self.wait_lds(F_PROG, g0 + 3 * half + 3)
            for kk in range(3):
                ks = 3 * half + kk
                a, off = (16, ks * 4096) if ks < 9 else (17, (ks - 9) * 4096)
                A("ds_read_b64_tr_b16 v[%d:%d], v%d offset:%d" % (104 + 4 * kk, 105 + 4 * kk, a, off))
                A("ds_read_b64_tr_b16 v[%d:%d], v%d offset:%d" % (106 + 4 * kk, 107 + 4 * kk, a, off + 512))
            for kk in range(3):
                ks = 3 * half + kk
                A("s_waitcnt lgkmcnt(%d)" % (4 - 2 * kk))
                A("v_mfma_f32_16x16x32_bf16 v[20:23], v[%d:%d], v[%d:%d], %s" % (104 + 4 * kk, 107 + 4 * kk, 32 + 4 * ks, 35 + 4 * ks, "0" if ks == 0 else "v[20:23]"))
        if free is not None:
            self.signal(free)
        self.publish_tile(20, W_MOD, unit_sgpr)

    def sel_masks(self):
        A = self.A
        for i, m in enumerate((0x00f000f0, 0x0f000f00, 0xf000f000)):
            A("s_mov_b32 s%d, 0x%08x\ns_mov_b32 s%d, 0x%08x" % (70 + 2 * i, m, 71 + 2 * i, m))

    def publish3(self, acc, dst, vaddr, soff):
        A = self.A
        for t in range(3):
            a = acc + 4 * t
            A("v_cndmask_b32 v%d, v%d, v%d, s[70:71]" % (dst + t, a, a + 1))
        for t in range(3):
            a = acc + 4 * t
            A("v_cndmask_b32 v%d, v%d, v%d, s[72:73]" % (dst + t, dst + t, a + 2))
        for t in range(3):
            a = acc + 4 * t
            A("v_cndmask_b32 v%d, v%d, v%d, s[74:75]" % (dst + t, dst + t, a + 3))
        A("buffer_store_dwordx4 v[%d:%d], v%d, s[%d:%d], %s offen sc1" % (dst, dst + 3, vaddr, S_SRD, S_SRD + 3, soff))

    def rho_addr(self, dst, per_rho):
        A = self.A
        A("v_and_b32 v6, 3, v%d\nv_mul_u32_u24 v6, 24, v6" % V_N)
        A("v_lshrrev_b32 v7, 1, v%d" % V_G)
        A("s_lshl_b32 s50, s%d, 1" % S_W)
        A("v_add3_u32 v6, v6, v7, s50")
        A("v_mul_u32_u24 v6, %d, v6" % per_rho)
        A("v_and_b32 v7, 1, v%d\nv_lshlrev_b32 v7, 6, v7" % V_G)
        A("v_lshrrev_b32 v%d, 2, v%d" % (dst, V_N))
        A("v_lshl_add_u32 v7, v%d, 4, v7" % dst)
        A("v_add_u32 v%d, v6, v7" % dst)

    def tile3_addrs(self, dst, base, cbstride):
        A = self.A
        for t in range(3):
            A("s_mul_i32 s50, s%d, 3\ns_add_u32 s50, s50, %d\ns_and_b32 s51, s50, 3\ns_lshr_b32 s50, s50, 2" % (S_W, t))
            A("s_mul_i32 s50, s50, %d\ns_add_u32 s50, s50, %d" % (cbstride, base))
            self.unit_tr_addr(dst + t, "s51", "s50")

    def rwave(self):
        A, o = self.A, self.o
        A("s_cmp_ge_u32 s%d, 14" % S_J)
        A("s_cbranch_scc1 R_mlp")
        A("s_cmp_ge_u32 s%d, 6" % S_J)
        A("s_cbranch_scc1 R_q")
        A("s_mul_i32 s64, s%d, 6\ns_add_u32 s64, s64, s%d" % (S_XC, S_J))
        self.mod_unit(VREG, 0, F_R1, "s64", F_FEFREE)
        self.stamp(1)
        A("s_branch R_post")
        A("R_q:")
        A("s_lshl_b32 s64, s%d, 3\ns_add_u32 s64, s64, s%d\ns_sub_u32 s64, s64, 6" % (S_XC, S_J))
        self.load_row3(S_X, 20)
        self.actw_addrs(8, 9)
        self.unit_tr_addr(16, "s%d" % S_W, VREG)
        A("v_add_u32 v17, 36864, v16")
        self.act_addr(18, ACT, ACTP, 3)
        A("s_lshl_b32 s65, s%d, 6\ns_add_u32 s65, s65, %d" % (S_W, W_MOD))
        self.granule_addrs(10, 11, 256, 16, "s65")
        A("v_cmp_gt_u32 s[66:67], 16, v0")
        A("s_waitcnt vmcnt(0)")
        X = 28
        for i in range(6):
            self.unpack(20 + i, X + 2 * i, X + 1 + 2 * i)
        A("v_add_f32 v20, v36, v37\nv_add_f32 v21, v38, v39\nv_add_f32 v20, v20, v21")
        A("v_cndmask_b32 v20, 0, v20, s[66:67]")
        for k in range(8):
            A("v_add_f32 v20, v20, v%d" % (X + k))
        self.allreduce([20], "v_add_f32", [21])
        A("v_mul_f32 v20, %s, v20" % hexf(1.0 / 576))
        for k in range(12):
            A("v_sub_f32 v%d, v%d, v20" % (40 + k, X + k))
        A("v_mul_f32 v21, v48, v48")
        for k in range(9, 12):
            A("v_fmac_f32 v21, v%d, v%d" % (40 + k, 40 + k))
        A("v_cndmask_b32 v21, 0, v21, s[66:67]")
        for k in range(8):
            A("v_fmac_f32 v21, v%d, v%d" % (40 + k, 40 + k))
        self.allreduce([21], "v_add_f32", [22])
        A("v_mul_f32 v21, %s, v21" % hexf(1.0 / 576))
        self.rbf2(20, 21, 22)
        A("v_add_f32 v21, %s, v21" % hexf(1e-5))
        self.rbf(21, 22)
        A("v_sqrt_f32 v21, v21\ns_nop 0")
        self.rbf(21, 22)
        A("v_rcp_f32 v21, v21")
        for k in range(12):
            A("v_sub_f32 v%d, v%d, v20" % (X + k, X + k))
        for k in range(0, 12, 2):
            self.rbf2(X + k, X + k + 1, 22)
        for k in range(12):
            A("v_mul_f32 v%d, v%d, v21" % (X + k, X + k))
        for k in range(0, 12, 2):
            self.rbf2(X + k, X + k + 1, 22)
        WF = 92
        for half in range(3):
            self.wait_lds(F_PROG, 6 * half + 6)
            for kk in range(6):
                ks = 6 * half + kk
                a, off = (16, ks * 4096) if ks < 9 else (17, (ks - 9) * 4096)
                A("ds_read_b64_tr_b16 v[%d:%d], v%d offset:%d" % (WF + 4 * ks, WF + 1 + 4 * ks, a, off))
                A("ds_read_b64_tr_b16 v[%d:%d], v%d offset:%d" % (WF + 2 + 4 * ks, WF + 3 + 4 * ks, a, off + 512))
        self.signal(F_FEFREE)
        self.stamp(1)
        A("s_movk_i32 s68, 4096\ns_movk_i32 s69, 8192\ns_movk_i32 s76, 9216\ns_movk_i32 s77, 13312\ns_movk_i32 s78, 17408")
        self.gather([(40, 10, "0", 0), (44, 10, "s68", 0), (48, 11, "s69", 0), (52, 10, "s76", 0), (56, 10, "s77", 0), (60, 11, "s78", 0)], 2, 22, sleep=2)
        self.stamp(2)
        for i in range(3):
            for d in range(2):
                k = 4 * i + 2 * d
                self.unpack(52 + 4 * i + d, 64, 65)
                A("v_add_f32 v64, 1.0, v64\nv_add_f32 v65, 1.0, v65")
                self.rbf2(64, 65, 22)
                A("v_mul_f32 v64, v64, v%d\nv_mul_f32 v65, v65, v%d" % (X + k, X + k + 1))
                self.rbf2(64, 65, 22)
                self.unpack(40 + 4 * i + d, 66, 67)
                A("v_add_f32 v64, v64, v66\nv_add_f32 v65, v65, v67")
                A("v_cvt_pk_bf16_f32 v%d, v64, v65" % (68 + 2 * i + d))
        A("ds_write_b64 v8, v[68:69]\nds_write_b64 v8, v[70:71] offset:512\nds_write_b64 v9, v[72:73] offset:1024")
        self.signal(F_R1)
        self.wait_lds(F_R1, 4, sleep=0)
        for half in range(2):
            for kk in range(9):
                A("ds_read_b128 v[%d:%d], v18 offset:%d" % (28 + 4 * kk, 31 + 4 * kk, 64 * (9 * half + kk)))
            for kk in range(9):
                ks = 9 * half + kk
                A("s_waitcnt lgkmcnt(%d)" % (8 - kk))
                A("v_mfma_f32_16x16x32_bf16 v[20:23], v[%d:%d], v[%d:%d], %s" % (WF + 4 * ks, WF + 3 + 4 * ks, 28 + 4 * kk, 31 + 4 * kk, "0" if ks == 0 else "v[20:23]"))
        self.publish_tile(20, W_Q2, "s64")
        self.stamp(3)
        A("R_post:")
        A("s_cmp_ge_u32 s2, 102")
        A("s_cbranch_scc1 L_exit")
        A("s_cmp_ge_u32 s%d, 12" % S_J)
        A("s_cbranch_scc1 R_late")
        A("s_and_b32 s64, s%d, 3\ns_lshl_b32 s50, s%d, 2\ns_add_u32 s64, s64, s50\ns_lshr_b32 s65, s%d, 2" % (S_J, S_XC, S_J))
        self.tile3_addrs(16, KREG, 16384)
        self.act_addr(19, OL, 320, 3)
        self.rho_addr(20, 4096)
        self.sel_masks()
        A("s_lshl_b32 s66, s65, 15\ns_lshl_b32 s50, s64, 7\ns_add_u32 s66, s66, s50\ns_add_u32 s66, s66, %d" % W_A4)
        A("s_lshl_b32 s67, s64, 13\ns_lshl_b32 s50, s%d, 11\ns_add_u32 s67, s67, s50\ns_add_u32 s67, s67, %d" % (S_W, W_O3))
        A("v_lshrrev_b32 v6, 5, v0\nv_and_b32 v7, 31, v0\nv_lshlrev_b32 v21, 4, v7\nv_lshl_add_u32 v21, v6, 10, v21")
        A("s_mul_i32 s50, s%d, 320\ns_add_u32 s50, s50, %d" % (S_W, MISC + OL))
        A("v_lshlrev_b32 v22, 3, v7\nv_lshl_add_u32 v22, v6, 2, v22\nv_add_u32 v22, s50, v22")
        A("v_mov_b32 v27, s%d" % S_TAG)
        WF = 64
        self.wait_lds(F_PROG, G_L0 + 12)
        for t in range(3):
            for ks in range(4):
                r = WF + 16 * t + 4 * ks
                A("ds_read_b64_tr_b16 v[%d:%d], v%d offset:%d" % (r, r + 1, 16 + t, ks * 4096))
                A("ds_read_b64_tr_b16 v[%d:%d], v%d offset:%d" % (r + 2, r + 3, 16 + t, ks * 4096 + 512))
        self.stamp(4)
        self.gather([(28, 21, "s67", 0), (32, 21, "s67", 512)], 2, 23)
        self.stamp(5)
        A("v_max_f32 v36, v31, v35")
        self.allreduce([36], "v_max_f32", [37], steps=("p32",))
        A("v_sub_f32 v31, v31, v36\nv_sub_f32 v35, v35, v36\nv_exp_f32 v31, v31\nv_exp_f32 v35, v35")
        self.unpack(28, 40, 41); self.unpack(29, 42, 43); self.unpack(32, 44, 45); self.unpack(33, 46, 47)
        A("v_add_f32 v36, v31, v35")
        for k in range(4):
            A("v_mul_f32 v%d, v%d, v31" % (40 + k, 40 + k))
        A("v_mov_b32 v37, v36")
        for k in range(4):
            A("v_fmac_f32 v%d, v%d, v35" % (40 + k, 44 + k))
        A("v_permlane32_swap_b32 v36, v37")
        A("s_nop 0")
        A("v_permlane32_swap_b32 v40, v42\nv_permlane32_swap_b32 v41, v43")
        A("v_add_f32 v36, v36, v37\nv_rcp_f32 v36, v36")
        A("v_add_f32 v40, v40, v42\nv_add_f32 v41, v41, v43")
        A("v_mul_f32 v40, v40, v36\nv_mul_f32 v41, v41, v36")
        A("v_cvt_pk_bf16_f32 v40, v40, v41")
        A("ds_write_b32 v22, v40")
        self.signal(F_R2)
        self.wait_lds(F_R2, 4, sleep=0)
        for ks in range(4):
            A("ds_read_b128 v[%d:%d], v19 offset:%d" % (28 + 4 * ks, 31 + 4 * ks, 64 * ks))
        for ks in range(4):
            A("s_waitcnt lgkmcnt(%d)" % (3 - ks))
            for t in range(3):
                r = WF + 16 * t + 4 * ks
                A("v_mfma_f32_16x16x32_bf16 v[%d:%d], v[%d:%d], v[%d:%d], %s" % (44 + 4 * t, 47 + 4 * t, r, r + 3, 28 + 4 * ks, 31 + 4 * ks, "0" if ks == 0 else "v[%d:%d]" % (44 + 4 * t, 47 + 4 * t)))
        A("s_nop 7")
        self.publish3(44, 24, 20, "s66")
        self.stamp(6)
        A("s_branch L_exit")
        A("R_late:")
        A("s_add_u32 s64, s%d, 48" % S_XC)
        self.signal(F_R5)
        self.wait_lds(F_R5, 4)
        self.mod_unit(KREG, G_L0, F_R4, "s64", None)
        self.stamp(6)
        A("s_branch L_exit")
        A("R_mlp:")
        A("s_mul_i32 s64, s%d, 18\ns_add_u32 s64, s64, s%d\ns_sub_u32 s64, s64, 14" % (S_XC, S_J))
        A("v_and_b32 v6, 1, v%d\nv_and_b32 v7, 2, v%d\nv_xor_b32 v6, v6, v7\nv_xor_b32 v6, s%d, v6\nv_lshlrev_b32 v6, 4, v6" % (V_G, V_N, S_W))
        A("v_lshl_add_u32 v6, v7, 10, v6")
        A("v_and_b32 v7, 1, v%d\nv_lshl_add_u32 v6, v7, 3, v6" % V_N)
        A("v_lshrrev_b32 v7, 2, v%d\nv_lshl_add_u32 v7, v%d, 3, v7\nv_lshl_add_u32 v14, v7, 6, v6" % (V_N, V_G))
        A("v_add_u32 v15, 36864, v14")
        self.tile3_addrs(16, VREG, 4096)
        self.act_addr(19, ACT, ACTP, 3)
        self.act_addr(13, AL, 64, 3)
        self.rho_addr(12, 18432)
        self.sel_masks()
        A("s_lshl_b32 s66, s64, 7\ns_add_u32 s66, s66, %d\ns_add_u32 s67, s66, 147456\ns_add_u32 s68, s67, 147456" % W_D6)
        A("v_and_b32 v6, 3, v%d\nv_lshlrev_b32 v6, 6, v6\nv_and_b32 v7, 1, v%d\nv_lshl_add_u32 v6, v7, 3, v6" % (V_N, V_G))
        A("v_lshrrev_b32 v7, 1, v%d\nv_lshl_add_u32 v6, v7, 2, v6" % V_G)
        A("s_lshl_b32 s50, s%d, 4\ns_add_u32 s50, s50, %d\nv_add_u32 v11, s50, v6" % (S_W, MISC + AL))
        WF = 92
        for half in range(3):
            self.wait_lds(F_PROG, G_L0 + 6 * half + 6)
            for kk in range(6):
                ks = 6 * half + kk
                a, off = (14, ks * 4096) if ks < 9 else (15, (ks - 9) * 4096)
                A("ds_read_b64_tr_b16 v[%d:%d], v%d offset:%d" % (WF + 4 * ks, WF + 1 + 4 * ks, a, off))
                A("ds_read_b64_tr_b16 v[%d:%d], v%d offset:%d" % (WF + 2 + 4 * ks, WF + 3 + 4 * ks, a, off + 256))
        self.stamp(1)
        self.wait_lds(F_H2, 4, sleep=0)
        self.stamp(2)
        for half in range(2):
            for kk in range(9):
                A("ds_read_b128 v[%d:%d], v19 offset:%d" % (28 + 4 * kk, 31 + 4 * kk, 64 * (9 * half + kk)))
            for kk in range(9):
                ks = 9 * half + kk
                A("s_waitcnt lgkmcnt(%d)" % (8 - kk))
                A("v_mfma_f32_16x16x32_bf16 v[20:23], v[%d:%d], v[%d:%d], %s" % (WF + 4 * ks, WF + 3 + 4 * ks, 28 + 4 * kk, 31 + 4 * kk, "0" if ks == 0 else "v[20:23]"))
        A("s_nop 7")
        A("v_permlane32_swap_b32 v20, v22\nv_permlane32_swap_b32 v21, v23")
        self.rbf2(20, 21, 24)
        self.rbf2(22, 23, 24)
        for k in range(2):
            A("v_mul_f32 v%d, v%d, v%d" % (24 + k, 20 + k, 20 + k))
        c1 = -2.0 * 0.7978845608028654 * LOG2E
        A("v_mov_b32 v26, %s" % hexf(c1))
        for k in range(2):
            A("v_fmamk_f32 v%d, v%d, %s, v26" % (24 + k, 24 + k, hexf(c1 * 0.044715)))
        for k in range(2):
            A("v_mul_f32 v%d, v%d, v%d" % (24 + k, 24 + k, 20 + k))
        for k in range(2):
            A("v_exp_f32 v%d, v%d" % (24 + k, 24 + k))
        A("s_nop 0")
        for k in range(2):
            A("v_add_f32 v%d, 1.0, v%d" % (24 + k, 24 + k))
        for k in range(2):
            A("v_rcp_f32 v%d, v%d" % (24 + k, 24 + k))
        A("s_nop 0")
        for k in range(2):
            A("v_mul_f32 v%d, v%d, v%d" % (20 + k, 20 + k, 24 + k))
        self.rbf2(20, 21, 24)
        A("v_mul_f32 v20, v20, v22\nv_mul_f32 v21, v21, v23")
        A("v_cvt_pk_bf16_f32 v20, v20, v21")
        A("s_mov_b32 exec_lo, 0x000f000f\ns_mov_b32 exec_hi, 0x000f000f")
        A("ds_write_b32 v11, v20")
        self.signal(F_R3)
        self.stamp(3)
        self.wait_lds(F_PROG, G_L0 + 27, sleep=0)
        for cg in range(3):
            for t in range(3):
                r = WF + 12 * cg + 4 * t
                A("ds_read_b64_tr_b16 v[%d:%d], v%d offset:%d" % (r, r + 1, 16 + t, cg * 12288))
                A("ds_read_b64_tr_b16 v[%d:%d], v%d offset:%d" % (r + 2, r + 3, 16 + t, cg * 12288 + 512))
        self.wait_lds(F_R3, 4, sleep=0)
        A("ds_read_b128 v[20:23], v13")
        A("v_mov_b32 v67, s%d\nv_mov_b32 v71, s%d\nv_mov_b32 v75, s%d" % (S_TAG, S_TAG, S_TAG))
        A("s_waitcnt lgkmcnt(0)")
        for i in range(9):
            A("v_mfma_f32_16x16x32_bf16 v[%d:%d], v[%d:%d], v[20:23], 0" % (28 + 4 * i, 31 + 4 * i, WF + 4 * i, WF + 3 + 4 * i))
        A("s_nop 1")
        self.publish3(28, 64, 12, "s66")
        self.publish3(40, 68, 12, "s67")
        self.publish3(52, 72, 12, "s68")
        self.stamp(4)
        A("s_branch L_exit")

    def awave(self):
        A, o = self.A, self.o
        A("s_lshr_b32 s64, s2, 6\ns_lshr_b32 s65, s2, 2\ns_and_b32 s65, s65, 15\ns_and_b32 s66, s2, 3")
        A("v_xor_b32 v6, v%d, v%d" % (V_G, V_N))
        A("s_lshl_b32 s50, s%d, 14" % S_W)
        A("v_lshl_add_u32 v7, v%d, 8, s50" % V_N)
        for t in range(4):
            A("v_xor_b32 v8, %d, v6\nv_lshl_add_u32 v%d, v8, 4, v7" % (4 * t, 10 + t))
        self.act_addr(14, QL, 320, 1)
        self.act_addr(15, PL, 576, 1)
        A("v_lshrrev_b32 v6, 2, v%d\nv_and_b32 v7, 1, v%d\nv_lshl_or_b32 v7, v7, 2, v6" % (V_N, V_G))
        A("v_lshl_add_u32 v6, v%d, 3, v6\nv_lshlrev_b32 v6, 8, v6" % V_G)
        A("v_and_b32 v8, 3, v%d\nv_lshl_add_u32 v6, v8, 3, v6\nv_add_u32 v6, %d, v6" % (V_N, VREG))
        A("s_lshl_b32 s50, s%d, 1" % S_W)
        A("v_xor_b32 v7, s50, v7\nv_lshl_add_u32 v16, v7, 5, v6\nv_xor_b32 v7, 1, v7\nv_lshl_add_u32 v17, v7, 5, v6")
        A("v_and_b32 v6, 1, v%d\nv_mul_u32_u24 v7, 576, v6\nv_lshl_add_u32 v7, v%d, 3, v7" % (V_N, V_G))
        A("s_lshl_b32 s50, s%d, 7\ns_add_u32 s50, s50, %d\nv_add_u32 v18, s50, v7" % (S_W, MISC + PL))
        A("v_lshl_add_u32 v19, v6, 4, v%d" % V_F)
        A("s_lshl_b32 s50, s%d, 2\nv_add_u32 v20, s50, v19" % S_W)
        A("s_lshl_b32 s50, s65, 14\nv_lshl_add_u32 v21, v6, 13, s50")
        A("v_and_b32 v6, 2, v%d\nv_lshl_add_u32 v21, v6, 5, v21\nv_lshl_add_u32 v21, v%d, 4, v21" % (V_N, V_G))
        A("s_lshl_b32 s67, s64, 11\ns_lshl_b32 s50, s66, 9\ns_add_u32 s67, s67, s50\ns_lshl_b32 s50, s%d, 7\ns_add_u32 s67, s67, s50\ns_add_u32 s67, s67, %d" % (S_W, W_O3))
        A("s_lshl_b32 s68, s%d, 2\ns_add_u32 s68, s68, %d" % (S_W, G_K0 + 4))
        self.wait_lds(F_PROG, "s68")
        for tau in range(4):
            for t in range(4):
                r = 64 + 16 * tau + 4 * t
                A("ds_read_b128 v[%d:%d], v%d offset:%d" % (r, r + 3, 10 + t, tau * 4096))
        self.signal(F_KFREE)
        self.stamp(1)
        A("s_cmp_lg_u32 s%d, 0" % S_W)
        A("s_cbranch_scc1 A_noq")
        A("s_lshl_b32 s68, s65, 12\ns_lshl_b32 s50, s64, 6\ns_add_u32 s68, s68, s50\ns_add_u32 s68, s68, %d" % W_Q2)
        A("v_lshrrev_b32 v6, 2, v0\nv_and_b32 v7, 3, v0\nv_lshlrev_b32 v7, 4, v7\nv_lshl_add_u32 v22, v6, 8, v7")
        A("v_lshrrev_b32 v6, 5, v0\nv_mul_u32_u24 v6, 320, v6\nv_and_b32 v7, 31, v0\nv_lshl_add_u32 v6, v7, 3, v6\nv_add_u32 v23, %d, v6" % (MISC + QL))
        self.gather([(24, 22, "s68", 0)], 2, 28, sleep=4)
        A("ds_write_b64 v23, v[24:25]")
        self.signal(F_QF)
        A("A_noq:")
        self.wait_lds(F_QF, 1)
        self.stamp(2)
        for t in range(4):
            A("ds_read_b128 v[%d:%d], v14 offset:%d" % (24 + 4 * t, 27 + 4 * t, 64 * t))
        S = 40
        for t in range(4):
            A("s_waitcnt lgkmcnt(%d)" % (3 - t))
            for tau in range(4):
                r = 64 + 16 * tau + 4 * t
                A("v_mfma_f32_16x16x32_bf16 v[%d:%d], v[%d:%d], v[%d:%d], %s" % (S + 4 * tau, S + 3 + 4 * tau, r, r + 3, 24 + 4 * t, 27 + 4 * t, "0" if t == 0 else "v[%d:%d]" % (S + 4 * tau, S + 3 + 4 * tau)))
        A("s_nop 4")
        for k in range(0, 16, 2):
            self.rbf2(S + k, S + k + 1, 22)
            A("v_mul_f32 v%d, %s, v%d\nv_mul_f32 v%d, %s, v%d" % (S + k, hexf(128 ** -0.5), S + k, S + k + 1, hexf(128 ** -0.5), S + k + 1))
            self.rbf2(S + k, S + k + 1, 22)
        A("v_max3_f32 v22, v%d, v%d, v%d" % (S, S + 1, S + 2))
        for k in range(3, 15, 2):
            A("v_max3_f32 v22, v22, v%d, v%d" % (S + k, S + k + 1))
        A("v_max_f32 v22, v22, v%d" % (S + 15))
        self.allreduce([22], "v_max_f32", [23], steps=("p16", "p32"))
        A("s_mov_b64 exec, 3")
        A("ds_write_b32 v20, v22 offset:%d" % WMAX)
        self.signal(F_A1)
        self.wait_lds(F_A1, 4, sleep=0)
        A("ds_read_b128 v[24:27], v19 offset:%d" % WMAX)
        A("s_waitcnt lgkmcnt(0)")
        A("v_max3_f32 v22, v24, v25, v26\nv_max_f32 v22, v22, v27")
        A("v_mul_f32 v22, %s, v22" % hexf(LOG2E))
        A("s_mov_b32 s50, %s" % hexf(LOG2E))
        for k in range(16):
            A("v_fma_f32 v%d, v%d, s50, -v22" % (S + k, S + k))
        for k in range(16):
            A("v_exp_f32 v%d, v%d" % (S + k, S + k))
        A("v_add_f32 v23, v%d, v%d" % (S, S + 1))
        for k in range(2, 16):
            A("v_add_f32 v23, v23, v%d" % (S + k))
        for k in range(8):
            A("v_cvt_pk_bf16_f32 v%d, v%d, v%d" % (24 + k, S + 2 * k, S + 2 * k + 1))
        self.allreduce([23], "v_add_f32", [32], steps=("p16", "p32"))
        A("s_mov_b32 exec_lo, 0x00030003\ns_mov_b32 exec_hi, 0x00030003")
        for tau in range(4):
            A("ds_write_b64 v18, v[%d:%d] offset:%d" % (24 + 2 * tau, 25 + 2 * tau, 32 * tau))
        A("s_mov_b64 exec, 3")
        A("ds_write_b32 v20, v23 offset:%d" % WSUM)
        self.signal(F_A2)
        self.wait_lds(F_A2, 4, sleep=0)
        A("ds_read_b128 v[24:27], v19 offset:%d" % WSUM)
        P = 64
        for s in range(8):
            A("ds_read_b128 v[%d:%d], v15 offset:%d" % (P + 4 * s, P + 3 + 4 * s, 64 * s))
        A("s_waitcnt lgkmcnt(8)")
        A("v_add_f32 v23, v24, v25\nv_add_f32 v24, v26, v27\nv_add_f32 v23, v23, v24")
        A("v_log_f32 v31, v23\nv_rcp_f32 v23, v23")
        A("v_mov_b32 v30, s%d" % S_TAG)
        A("v_add_f32 v31, v31, v22")
        A("s_mov_b32 s70, 0xcccccccc\ns_mov_b32 s71, 0xcccccccc")
        self.stamp(3)
        for s in range(8):
            self.wait_lds(F_PROG, G_V0 + 2 * s + 2, sleep=(1 if s < 7 else 0))
            vb = 40 + 8 * (s & 1)
            for u in range(2):
                A("ds_read_b64_tr_b16 v[%d:%d], v%d offset:%d" % (vb + 4 * u, vb + 1 + 4 * u, 16 + u, s * 8192))
                A("ds_read_b64_tr_b16 v[%d:%d], v%d offset:%d" % (vb + 2 + 4 * u, vb + 3 + 4 * u, 16 + u, s * 8192 + 1024))
            for u in range(2):
                A("s_waitcnt lgkmcnt(%d)" % (2 - 2 * u))
                A("v_mfma_f32_16x16x32_bf16 v[%d:%d], v[%d:%d], v[%d:%d], %s" % (32 + 4 * u, 35 + 4 * u, vb + 4 * u, vb + 3 + 4 * u, P + 4 * s, P + 3 + 4 * s, "0" if s == 0 else "v[%d:%d]" % (32 + 4 * u, 35 + 4 * u)))
        self.signal(F_VFREE)
        A("s_nop 4")
        for k in range(4):
            A("v_cndmask_b32 v%d, v%d, v%d, s[70:71]" % (32 + k, 32 + k, 36 + k))
        for k in range(4):
            A("v_mul_f32 v%d, v%d, v23" % (32 + k, 32 + k))
        A("v_cvt_pk_bf16_f32 v28, v32, v33\nv_cvt_pk_bf16_f32 v29, v34, v35")
        A("s_mov_b32 exec_lo, 0x000f000f\ns_mov_b32 exec_hi, 0x000f000f")
        A("buffer_store_dwordx4 v[28:31], v21, s[%d:%d], s67 offen sc1" % (S_SRD, S_SRD + 3))
        A("s_mov_b64 exec, -1")
        self.stamp(4)
        A("s_cmp_ge_u32 s%d, 14" % S_J)
        A("s_cbranch_scc1 A_mlp")
        A("s_cmp_ge_u32 s%d, 12" % S_J)
        A("s_cbranch_scc1 L_exit")
        A("s_cmp_lg_u32 s%d, 0" % S_W)
        A("s_cbranch_scc1 L_exit")
        A("s_mul_i32 s64, s%d, 12\ns_add_u32 s64, s64, s%d" % (S_XC, S_J))
        A("s_lshr_b32 s65, s%d, 1" % S_XC)
        A("s_mul_i32 s50, s65, 24\ns_sub_u32 s66, s64, s50")
        A("s_lshr_b32 s50, s66, 1\ns_mul_i32 s50, s50, 48\ns_and_b32 s51, s66, 1\ns_lshl_b32 s51, s51, 3\ns_add_u32 s66, s50, s51")
        A("v_and_b32 v6, 7, v0\nv_add_u32 v6, s66, v6")
        A("s_mul_i32 s50, s65, 1152\nv_lshl_add_u32 v10, v6, 1, s50")
        for t in range(3):
            A("global_load_ushort v%d, v10, s[%d:%d] offset:%d" % (20 + t, S_X, S_X + 1, 32 * t))
        A("v_lshrrev_b32 v7, 4, v6\nv_lshlrev_b32 v7, 8, v7\nv_bfe_u32 v8, v6, 2, 2\nv_lshl_add_u32 v7, v8, 4, v7")
        A("s_lshl_b32 s50, s65, 6\nv_add_u32 v11, s50, v7")
        A("s_mov_b32 s68, %d\ns_mov_b32 s69, %d" % (W_MOD + 2 * 9216, W_MOD + 5 * 9216))
        A("s_mov_b32 s70, 0xcccccccc\ns_mov_b32 s71, 0xcccccccc\ns_mov_b32 s72, 0xaaaaaaaa\ns_mov_b32 s73, 0xaaaaaaaa")
        def pick(dst):
            for t in range(3):
                g = 28 + 4 * t
                A("v_cndmask_b32 v%d, v%d, v%d, s[70:71]" % (g, g, g + 1))
                self.unpack(g, g + 1, g + 2)
                A("v_cndmask_b32 v%d, v%d, v%d, s[72:73]" % (dst + t, g + 1, g + 2))
        self.gather([(28 + 4 * t, 11, "s68", 256 * t) for t in range(3)], 2, 23, sleep=2)
        pick(24)
        for t in range(3):
            A("v_lshlrev_b32 v%d, 16, v%d" % (20 + t, 20 + t))
        A("v_lshlrev_b32 v12, 4, v0")
        A("s_lshl_b32 s74, s64, 12\ns_add_u32 s74, s74, %d" % W_A4)
        A("s_lshl_b32 s75, s64, 7\ns_add_u32 s75, s75, %d" % W_X2)
        A("v_mov_b32 v19, s%d" % S_TAG)
        self.stamp(5)
        self.gather([(28 + 4 * i, 12, "s74", 1024 * i) for i in range(4)], 3, 23)
        self.stamp(6)
        for k in range(3):
            A("v_add_f32 v%d, v%d, v%d" % (28 + k, 28 + k, 32 + k))
            A("v_add_f32 v%d, v%d, v%d" % (36 + k, 36 + k, 40 + k))
        for k in range(3):
            A("v_add_f32 v%d, v%d, v%d" % (16 + k, 28 + k, 36 + k))
        self.allreduce([16, 17, 18], "v_add_f32", [28, 29, 30], steps=("r8", "p16", "p32"))
        self.rbf2(16, 17, 28); self.rbf(18, 28)
        for k in range(3):
            A("v_mul_f32 v%d, v%d, v%d" % (16 + k, 16 + k, 24 + k))
        self.rbf2(16, 17, 28); self.rbf(18, 28)
        for k in range(3):
            A("v_add_f32 v%d, v%d, v%d" % (16 + k, 16 + k, 20 + k))
        self.rbf2(16, 17, 28); self.rbf(18, 28)
        A("s_mov_b64 exec, 0xff")
        A("buffer_store_dwordx4 v[16:19], v12, s[%d:%d], s75 offen sc1" % (S_SRD, S_SRD + 3))
        A("s_mov_b64 exec, -1")
        self.stamp(7)
        self.gather([(28 + 4 * t, 11, "s69", 256 * t) for t in range(3)], 2, 23, sleep=2)
        pick(24)
        A("s_mul_i32 s74, s64, 18432\ns_add_u32 s74, s74, %d" % W_D6)
        for i in range(1, 5):
            A("s_add_u32 s%d, s74, %d" % (75 + i, 4096 * i))
        so = ["s74", "s76", "s77", "s78", "s79"]
        self.stamp(8)
        self.gather([(28 + 4 * i, 12, so[i >> 2], 1024 * (i & 3)) for i in range(18)], 3, 23)
        self.stamp(9)
        for i in range(2, 18):
            for k in range(3):
                A("v_add_f32 v%d, v%d, v%d" % (28 + 4 * (i & 1) + k, 28 + 4 * (i & 1) + k, 28 + 4 * i + k))
        for k in range(3):
            A("v_add_f32 v%d, v%d, v%d" % (20 + k, 28 + k, 32 + k))
        self.allreduce([20, 21, 22], "v_add_f32", [28, 29, 30], steps=("r8", "p16", "p32"))
        self.rbf2(20, 21, 28); self.rbf(22, 28)
        for k in range(3):
            A("v_mul_f32 v%d, v%d, v%d" % (20 + k, 20 + k, 24 + k))
        self.rbf2(20, 21, 28); self.rbf(22, 28)
        for k in range(3):
            A("v_add_f32 v%d, v%d, v%d" % (20 + k, 20 + k, 16 + k))
        for k in range(3):
            A("v_cvt_pk_bf16_f32 v%d, v%d, v%d" % (20 + k, 20 + k, 20 + k))
        A("s_mov_b64 exec, 0xff")
        for t in range(3):
            A("global_store_short v10, v%d, s[%d:%d] offset:%d" % (20 + t, S_OUT, S_OUT + 1, 32 * t))
        A("s_cmp_lg_u32 s64, 0")
        A("s_cbranch_scc1 A_noep")
        A("s_mov_b64 exec, 1")
        A("v_mov_b32 v12, 0")
        A("buffer_store_dword v19, v12, s[%d:%d], 0 offen sc1" % (S_SRD, S_SRD + 3))
        A("A_noep:")
        A("s_mov_b64 exec, -1")
        self.stamp(10)
        A("s_branch L_exit")
        A("A_mlp:")
        A("s_lshl_b32 s65, s%d, 6\ns_add_u32 s65, s65, %d" % (S_W, W_MOD + 3 * 9216))
        self.granule_addrs(10, 11, 256, 16, "s65")
        self.actw_addrs(8, 9)
        A("v_mul_u32_u24 v6, 48, v%d\nv_add_u32 v6, v6, v%d\nv_lshl_add_u32 v12, v6, 1, s50" % (V_G, V_N))
        A("s_movk_i32 s68, 4096\ns_movk_i32 s69, 8192\ns_movk_i32 s76, 9216\ns_movk_i32 s77, 13312\ns_movk_i32 s78, 17408")
        self.gather([(40, 10, "0", 0), (44, 10, "s68", 0), (48, 11, "s69", 0), (52, 10, "s76", 0), (56, 10, "s77", 0), (60, 11, "s78", 0)], 2, 22, sleep=2)
        for sec, (src, dst) in enumerate(((40, 64), (52, 76))):
            A("ds_write_b64 v8, v[%d:%d]\nds_write_b64 v8, v[%d:%d] offset:512\nds_write_b64 v9, v[%d:%d] offset:1024" % (src, src + 1, src + 4, src + 5, src + 8, src + 9))
            for i in range(3):
                for t in range(3):
                    A("ds_read_u16 v%d, v12 offset:%d" % (dst + 3 * i + t, 384 * i + 32 * t))
        A("s_waitcnt lgkmcnt(0)")
        for k in range(9):
            A("v_lshlrev_b32 v%d, 16, v%d" % (64 + k, 64 + k))
            A("v_lshlrev_b32 v%d, 16, v%d" % (76 + k, 76 + k))
            A("v_add_f32 v%d, 1.0, v%d" % (76 + k, 76 + k))
            self.rbf(76 + k, 22)
        A("v_lshlrev_b32 v13, 4, v0")
        A("s_mul_i32 s66, s%d, 3072\ns_add_u32 s66, s66, %d" % (S_W, W_X2))
        self.stamp(5)
        self.wait_lds(F_PROG, o["x2wait"])
        self.stamp(6)
        self.gather([(28 + 4 * i, 13, "s66", 1024 * i) for i in range(3)], 3, 22)
        self.stamp(7)
        xs = [28 + 4 * i + t for i in range(3) for t in range(3)]
        A("v_add_f32 v20, v%d, v%d\nv_add_f32 v21, v%d, v%d" % (xs[0], xs[1], xs[2], xs[3]))
        A("v_add_f32 v20, v20, v%d\nv_add_f32 v21, v21, v%d\nv_add_f32 v20, v20, v%d\nv_add_f32 v21, v21, v%d\nv_add_f32 v20, v20, v%d" % tuple(xs[4:9]))
        A("v_add_f32 v20, v20, v21")
        self.allreduce([20], "v_add_f32", [21])
        for x in xs:
            A("v_fmac_f32 v%d, %s, v20" % (x, hexf(-1.0 / 576)))
        A("v_mul_f32 v20, v%d, v%d\nv_mul_f32 v21, v%d, v%d" % (xs[0], xs[0], xs[1], xs[1]))
        for i, x in enumerate(xs[2:]):
            A("v_fmac_f32 v%d, v%d, v%d" % (20 + (i & 1), x, x))
        A("v_add_f32 v20, v20, v21")
        for k, x in enumerate(xs):
            A("v_mul_f32 v%d, v%d, v%d" % (x, x, 76 + k))
        self.allreduce([20], "v_add_f32", [21])
        A("v_mov_b32 v21, %s" % hexf(1e-5))
        A("v_fmac_f32 v21, %s, v20" % hexf(1.0 / 576))
        A("v_rsq_f32 v21, v21\ns_nop 0")
        for k, x in enumerate(xs):
            A("v_fma_f32 v%d, v%d, v21, v%d" % (x, x, 64 + k))
        for k in range(0, 8, 2):
            A("v_cvt_pk_bf16_f32 v%d, v%d, v%d" % (xs[k], xs[k], xs[k + 1]))
        A("v_cvt_pk_bf16_f32 v%d, v%d, v%d" % (xs[8], xs[8], xs[8]))
        for k in range(9):
            off = 384 * (k // 3) + 32 * (k % 3)
            if k & 1:
                A("ds_write_b16_d16_hi v12, v%d offset:%d" % (xs[k - 1], off))
            else:
                A("ds_write_b16 v12, v%d offset:%d" % (xs[k], off))
        self.signal(F_H2)
        self.stamp(8)
        A("s_branch L_exit")

    def build(self):
        A, o = self.A, self.o
        n = NAME + "_kernel"
        A(HDR.rstrip())
        A("; @launch grid=(256,1,1) block=(576,1,1) lds=163840")
        A('.amdgcn_target "amdgcn-amd-amdhsa--gfx950"\n.text')
        A(".globl %s\n.p2align 8\n.type %s,@function\n%s:" % (n, n, n))
        A("s_cmp_ge_u32 s2, 256")
        A("s_cbranch_scc1 L_end")
        A("s_load_dwordx16 s[4:19], s[0:1], 0")
        A("s_load_dwordx8 s[20:27], s[0:1], 64")
        A("s_load_dwordx4 s[28:31], s[0:1], 96")
        if o["dbg"]:
            A("s_memrealtime s[90:91]")
        A("v_readfirstlane_b32 s3, v0")
        A("v_and_b32 v0, 63, v0")
        A("s_and_b32 s%d, s2, 7\ns_lshr_b32 s%d, s2, 3" % (S_XC, S_J))
        A("v_and_b32 v%d, 15, v0\nv_lshrrev_b32 v%d, 4, v0" % (V_N, V_G))
        A("v_mov_b32 v%d, %d\nv_mov_b32 v%d, 1" % (V_F, MISC, V_ONE))
        A("s_mov_b32 s%d, %d" % (S_CNT, o["spin"]))
        A("s_lshr_b32 s3, s3, 6")
        if o["dbg"]:
            A("v_mov_b32 v%d, 0\ns_waitcnt lgkmcnt(0)\nv_writelane_b32 v%d, s90, 0" % (V_ST, V_ST))
        A("s_cmp_lg_u32 s3, 0")
        A("s_cbranch_scc1 L_notloader")
        self.loader()
        A("L_notloader:")
        A("s_waitcnt lgkmcnt(0)")
        A("s_mov_b32 s%d, s%d\ns_mov_b32 s%d, s%d\ns_mov_b32 s%d, %d\ns_mov_b32 s%d, 0x20000" % (S_SRD, S_WS, S_SRD + 1, S_WS + 1, S_SRD + 2, WS_BYTES, S_SRD + 3))
        A("s_load_dword s%d, s[%d:%d], 0" % (S_TAG, S_WS, S_WS + 1))
        A("s_sub_u32 s%d, s3, 1\ns_and_b32 s%d, s%d, 3" % (S_W, S_W, S_W))
        A("s_cmp_lg_u32 s3, 8")
        A("s_cbranch_scc1 L_noinit")
        A("v_mov_b32 v6, 0\nv_lshl_add_u32 v7, v0, 2, v%d" % V_F)
        A("ds_write_b32 v7, v6")
        if o["warm"]:
            A("s_cmp_lt_u32 s%d, 14" % S_J)
            A("s_cbranch_scc1 L_noinit")
            A("s_getpc_b64 s[50:51]")
            A("L_pc:")
            A("s_sub_u32 s50, s50, L_pc-%s\ns_subb_u32 s51, s51, 0" % n)
            A("s_and_b32 s52, s%d, 3\ns_lshl_b32 s52, s52, 13" % S_J)
            A("v_lshl_add_u32 v7, v0, 7, s52")
            A("v_min_u32 v7, L_end-%s, v7" % n)
            A("global_load_dword v166, v7, s[50:51]")
        A("L_noinit:")
        A("s_waitcnt lgkmcnt(0)")
        A("s_add_u32 s%d, s%d, 0x9e3779b9" % (S_TAG, S_TAG))
        A("s_barrier")
        A("s_cmp_ge_u32 s3, 5")
        A("s_cbranch_scc1 L_awave")
        self.rwave()
        A("L_awave:")
        self.awave()
        A("L_bail:")
        if o["dbg"]:
            A("s_mov_b64 exec, -1\nv_writelane_b32 v%d, -1, 31" % V_ST)
        A("L_exit:")
        if o["dbg"]:
            A("s_mov_b64 exec, 0xffffffff")
            A("s_mul_i32 s50, s2, 9\ns_add_u32 s50, s50, s3\ns_lshl_b32 s50, s50, 7\ns_add_u32 s50, s50, %d" % W_STAMP)
            A("v_lshl_add_u32 v6, v0, 2, s50")
            A("global_store_dword v6, v%d, s[%d:%d]" % (V_ST, S_WS, S_WS + 1))
        A("L_end:")
        A("s_endpgm")
        A('.section .rodata,"a"\n.p2align 6')
        A(".amdhsa_kernel %s\n  .amdhsa_next_free_vgpr 168\n  .amdhsa_next_free_sgpr 96\n  .amdhsa_accum_offset 168" % n)
        A("  .amdhsa_group_segment_fixed_size 0\n  .amdhsa_kernarg_size 112\n  .amdhsa_user_sgpr_count 2")
        A("  .amdhsa_user_sgpr_kernarg_segment_ptr 1\n  .amdhsa_system_sgpr_workgroup_id_x 1\n  .amdhsa_float_denorm_mode_32 3\n.end_amdhsa_kernel")
        return "\n".join(self.L) + "\n"


def build(**opt):
    return Gen(**opt).build()


if __name__ == "__main__":
    open("mk.s", "w").write(build())
    open("mk_dbg.s", "w").write(build(dbg=True))
```
